```python
import torch

def _softmax(x, axis=-1):
    return torch.softmax(x, dim=axis)
def _gelu(x):
    return torch.nn.functional.gelu(x, approximate="tanh")
def _silu(x):
    return torch.nn.functional.silu(x)
def _sigmoid(x):
    return torch.sigmoid(x)
def _layernorm(x, axis=-1, eps=1e-5):
    m = x.mean(dim=axis, keepdim=True)
    v = x.var(dim=axis, keepdim=True, unbiased=False)
    return (x - m) / torch.sqrt(v + eps)
def _scatter_add(tgt, idx, src, axis=0):
    return tgt.clone().index_add_(axis, idx, src)
def _segment_sum(src, seg, n):
    out = torch.zeros((n,) + src.shape[1:], dtype=src.dtype)
    return out.index_add_(0, seg, src)
def _pad(x, pw):
    flat = tuple(v for pair in reversed(pw) for v in pair)
    return torch.nn.functional.pad(x, flat)

kernel_name = 'standalone__softmax_full_bidir__prompt'

def setup_inputs():

    _w = (lambda a: (lambda t: t.to(torch.bfloat16) if t.is_floating_point() else t)(torch.as_tensor(a)))
    B, H, Sq, Skv, Dh = 1, 32, 2048, 2048, 128
    return {
        "q": _w((lambda *s: torch.randn(*s, dtype=torch.bfloat16) * 0.8)(B, H, Sq, Dh)),
        "k": _w((lambda *s: torch.randn(*s, dtype=torch.bfloat16) * 0.8)(B, H, Skv, Dh)),
        "v": _w((lambda *s: torch.randn(*s, dtype=torch.bfloat16) * 0.05)(B, H, Skv, Dh)),
    }

def reference(q, k, v):
    scale = q.shape[-1] ** -0.5
    scores = torch.einsum('bhqd,bhkd->bhqk', q, k) * scale
    attn = _softmax(scores, axis=-1)
    return torch.einsum('bhqk,bhkd->bhqd', attn, v)
```

```python
import sys
KN = "standalone__softmax_full_bidir__prompt_kernel"

def gen(name, shape, gaps, order="A", custom=None, pre=(), iters=64, chunks=1, ones=False, pos_p=True, frag="v", sreg="v", oreg="a", qreg="a", waves=4):
    L = []
    A = L.append
    nv, na = 256, 256
    A(f"; @launch grid=(256,1,1) block=({waves*64},1,1) lds=65536")
    A('.amdgcn_target "amdgcn-amd-amdhsa--gfx950"')
    A(".text")
    A(f".globl {KN}")
    A(".p2align 8")
    A(f".type {KN},@function")
    A(f"{KN}:")
    A("s_cmp_ge_u32 s2, 256")
    A("s_cbranch_scc1 L_done")
    A("s_load_dwordx2 s[4:5], s[0:1], 0")
    A("s_load_dwordx2 s[6:7], s[0:1], 40")
    A("s_waitcnt lgkmcnt(0)")
    A("s_mov_b32 s8, s4"); A("s_mov_b32 s9, s5"); A("s_mov_b32 s10, 16777216"); A("s_mov_b32 s11, 0x20000")
    A("s_mov_b32 s12, s6"); A("s_mov_b32 s13, s7"); A("s_mov_b32 s14, 1048576"); A("s_mov_b32 s15, 0x20000")
    A("s_lshl_b32 s3, s2, 16")
    A("v_lshlrev_b32 v1, 4, v0")
    A("v_add_u32 v1, s3, v1")
    for r in range(8, nv, 4):
        A(f"s_mov_b32 s16, {(r//4 % 16) * 4096}")
        A(f"buffer_load_dwordx4 v[{r}:{r+3}], v1, s[8:11], s16 offen")
    A("s_waitcnt vmcnt(0)")
    for r in range(0, na):
        A(f"v_accvgpr_write_b32 a{r}, v{8 + (r % (nv-8))}")
    A("v_lshlrev_b32 v2, 4, v0")
    for i in range(65536 // (waves*64*16)):
        A(f"ds_write_b128 v2, v[{8+4*(i%16)}:{8+4*(i%16)+3}] offset:{i*waves*64*16}")
    A("s_waitcnt lgkmcnt(0)")
    A("s_barrier")
    A("v_and_b32 v3, 63, v0")
    A("v_lshlrev_b32 v4, 3, v3")
    A("v_lshlrev_b32 v3, 4, v3")
    for r in range(0, 128):
        A(f"v_accvgpr_write_b32 a{r}, 0")
    for r in range(64, 128):
        A(f"v_mov_b32 v{r}, 0")
    for r in range(128, 160):
        A(f"v_mov_b32 v{r}, -2.0")
    if pos_p:
        for r in range(40, 64):
            A(f"v_add_f32 v5, -2.0, v{160 + (r-40)}")
            A(f"v_add_f32 v6, -2.0, v{192 + (r-40)}")
            A("v_exp_f32 v5, v5"); A("v_exp_f32 v6, v6"); A("s_nop 1")
            A(f"v_cvt_pk_bf16_f32 v{r}, v5, v6")
    for r in range(244, 248):
        A(f"v_mov_b32 v{r}, 0x3f803f80")
    for r in range(248, 256):
        A(f"v_mov_b32 v{r}, 0")
    A("v_mov_b32 v5, 0"); A("v_mov_b32 v6, 0"); A("v_mov_b32 v7, 0")
    A("v_readfirstlane_b32 s28, v0")
    A("s_and_b32 s19, s2, 7")
    A("s_lshl_b32 s19, s19, 21")
    A("s_lshr_b32 s29, s2, 6")
    A("s_lshl_b32 s29, s29, 19")
    A("s_add_u32 s19, s19, s29")
    A("s_lshl_b32 s28, s28, 6")
    A("s_mov_b32 m0, s28")
    A("v_lshrrev_b32 v2, 6, v0")
    A("v_lshlrev_b32 v2, 12, v2")
    A("v_add_u32 v2, v2, v3")
    A("s_barrier")
    A("s_memtime s[32:33]")
    A("s_memrealtime s[34:35]")
    A("s_waitcnt lgkmcnt(0)")
    st = dict(e=0, a=0, c=0, k=0, t=0)
    def fr(i, n=4):
        if frag == "v":
            b = 8 + 4 * (i % 8)
            return f"v[{b}:{b+n-1}]"
        b = 192 + 4 * (i % 16)
        return f"a[{b}:{b+n-1}]"
    def filler(f):
        if f == "exp":
            i = st['e'] % 32; st['e'] += 1
            A(f"v_exp_f32 v{192+i}, v{160+i}")
        elif f == "add":
            i = (st['a'] + 24) % 32; st['a'] += 1
            A(f"v_add_f32 v{5+(i&1)}, v{5+(i&1)}, v{192+i}")
        elif f == "mul":
            i = (st['a'] + 8) % 16
            A(f"v_mul_f32 v{224+i}, s16, v{160+i}")
        elif f == "pkadd":
            i = ((st['a'] + 12) % 16) * 2; st['a'] += 1
            A(f"v_pk_add_f32 v[6:7], v[6:7], v[{192+i}:{193+i}]")
        elif f == "dot2":
            i = st['c'] % 16
            A(f"v_dot2_f32_bf16 v5, v{224+i}, v{244}, v5")
        elif f == "dot2c":
            i = st['c'] % 16
            A(f"v_dot2c_f32_bf16 v5, v{224+i}, v{244}")
        elif f == "cvt":
            i = (st['c'] + 8) % 16; st['c'] += 1
            A(f"v_cvt_pk_bf16_f32 v{224+i}, v{192+2*i}, v{193+2*i}")
        elif f == "perm":
            i = (st['c'] + 8) % 16; st['c'] += 1
            A(f"v_perm_b32 v{224+i}, v{192+2*i}, v{193+2*i}, s16")
        elif f == "rk":
            i = st['k'] % 8; st['k'] += 1
            if frag == "a":
                A(f"ds_read_b128 a[{192+4*((i+3)%8)}:{192+4*((i+3)%8)+3}], v3 offset:{(st['k']%60)*1024}")
            else:
                A(f"ds_read_b128 a[{192+4*i}:{192+4*i+3}], v3 offset:{(st['k']%60)*1024}")
        elif f == "rv":
            i = st['t'] % 16; st['t'] += 1
            if frag == "a":
                i = (i + 6) % 16
            A(f"ds_read_b64_tr_b16 a[{224+2*i}:{224+2*i+1}], v4 offset:{(st['t']%120)*512}")
        elif f == "dma":
            st['d'] = st.get('d', 0) + 1
            A(f"buffer_load_dwordx4 v2, s[8:11], s19 offen offset:{(st['d']%4)*1024} lds")
        elif f == "m0":
            A(f"s_add_u32 m0, s28, {16384*(st.get('d',0)//4 % 3)}")
        elif f == "soff":
            A("s_add_u32 s19, s19, 16384")
        elif f == "vw":
            A("s_waitcnt vmcnt(4)")
        elif f == "bar":
            A("s_barrier")
        elif f == "wait":
            A("s_waitcnt lgkmcnt(6)")
        elif f == "nop":
            A("s_nop 0")
        elif f == "salu":
            A("s_add_u32 s18, s18, 1")
        elif f == "":
            pass
        else:
            raise ValueError(f)
    mf = []
    if shape == 32:
        qk = [(ds, qt) for ds in range(8) for qt in range(2)] if order in "A" else [(ds, qt) for qt in range(2) for ds in range(8)]
        for ds, qt in qk:
            c = f"v[{128+16*qt}:{128+16*qt+15}]" if ds == 0 else f"v[{64+16*qt}:{64+16*qt+15}]"
            mf.append(f"v_mfma_f32_32x32x16_bf16 v[{64+16*qt}:{64+16*qt+15}], {fr(ds)}, a[{128+32*qt+4*ds}:{128+32*qt+4*ds+3}], {c}")
        if order == "A":
            pv = [(t, dt, qt) for t in range(2) for dt in range(4) for qt in range(2)]
        elif order == "B":
            pv = [(t, dt, qt) for t in range(2) for qt in range(2) for dt in range(4)]
        else:
            pv = [(t, dt, qt) for qt in range(2) for dt in range(4) for t in range(2)]
        for t, dt, qt in pv:
            o = 64*qt + 16*dt
            mf.append(f"v_mfma_f32_32x32x16_bf16 a[{o}:{o+15}], {fr(8+4*t+dt)}, v[{40+8*qt+4*t}:{40+8*qt+4*t+3}], a[{o}:{o+15}]")
    else:
        if order == "A":
            qk = [(kt, ds, qt) for kt in range(2) for ds in range(4) for qt in range(4)]
            pv = [(dt, qt) for dt in range(8) for qt in range(4)]
        elif order == "B":
            qk = [(kt, ds, qt) for ds in range(4) for qt in range(4) for kt in range(2)]
            pv = [(dt, qt) for qt in range(4) for dt in range(8)]
        elif order == "C":
            qk = [(kt, ds, qt) for kt in range(2) for qt in range(4) for ds in range(4)]
            pv = [(dt, qt) for dt in range(8) for qt in range(4)]
        elif order == "S":
            qk = [(kt, ds, (qt if (ds % 2 == 0) else 3 - qt)) for kt in range(2) for ds in range(4) for qt in range(4)]
            pv = [(dt, (qt if dt % 2 == 0 else 3 - qt)) for dt in range(8) for qt in range(4)]
        for kt, ds, qt in qk:
            d = 64 + 16*kt + 4*qt
            c = f"v[{128+4*qt}:{128+4*qt+3}]" if ds == 0 else f"v[{d}:{d+3}]"
            mf.append(f"v_mfma_f32_16x16x32_bf16 v[{d}:{d+3}], {fr(4*kt+ds)}, a[{128+16*qt+4*ds}:{128+16*qt+4*ds+3}], {c}")
        for dt, qt in pv:
            o = 32*qt + 4*dt
            mf.append(f"v_mfma_f32_16x16x32_bf16 a[{o}:{o+3}], {fr(8+dt)}, v[{40+4*qt}:{40+4*qt+3}], a[{o}:{o+3}]")
        if ones:
            for qt in range(4):
                mf.append(f"v_mfma_f32_16x16x32_bf16 v[{96+4*qt}:{96+4*qt+3}], v[244:247], v[{40+4*qt}:{40+4*qt+3}], v[{96+4*qt}:{96+4*qt+3}]")
    if custom is not None:
        mf = custom
    for p in pre:
        A(p)
    for ch in range(chunks):
        A(f"s_mov_b32 s17, {iters // chunks}")
        A(".p2align 6")
        A(f"L_loop{ch}:")
        for i, m in enumerate(mf):
            A(m)
            if i < len(gaps) or len(gaps) < 32:
                for f in gaps[i % len(gaps)].split(","):
                    filler(f)
        A("s_sub_u32 s17, s17, 1")
        A("s_cmp_lg_u32 s17, 0")
        A(f"s_cbranch_scc1 L_loop{ch}")
        A("s_waitcnt lgkmcnt(0)")
        A(f"s_memtime s[{36+4*ch}:{37+4*ch}]")
        A(f"s_memrealtime s[{38+4*ch}:{39+4*ch}]")
    A("s_waitcnt lgkmcnt(0)")
    n = 4 * (chunks + 1)
    for i in range(n):
        A(f"v_mov_b32 v{8+i}, s{32+i}")
    A("v_cmp_eq_u32 vcc, 0, v0")
    A("s_and_saveexec_b64 s[30:31], vcc")
    A("s_cbranch_execz L_done")
    A(f"s_mul_i32 s3, s2, {n*4}")
    A("v_mov_b32 v1, s3")
    for i in range(chunks + 1):
        A(f"buffer_store_dwordx4 v[{8+4*i}:{11+4*i}], v1, s[12:15], 0 offen offset:{16*i}")
    A("s_waitcnt vmcnt(0)")
    A("L_done:")
    A("s_endpgm")
    A('.section .rodata,"a"')
    A(".p2align 6")
    A(f".amdhsa_kernel {KN}")
    A(f"  .amdhsa_next_free_vgpr {nv+na}")
    A("  .amdhsa_next_free_sgpr 102")
    A(f"  .amdhsa_accum_offset {nv}")
    A("  .amdhsa_group_segment_fixed_size 0")
    A("  .amdhsa_kernarg_size 48")
    A("  .amdhsa_user_sgpr_count 2")
    A("  .amdhsa_user_sgpr_kernarg_segment_ptr 1")
    A("  .amdhsa_system_sgpr_workgroup_id_x 1")
    A(".end_amdhsa_kernel")
    open(name, "w").write("\n".join(L) + "\n")

if __name__ == "__main__":
    import os
    os.makedirs("mb2", exist_ok=True)
    gen("mb2/t32_chunks.s", 32, [""], chunks=8)
    gen("mb2/t16_chunks.s", 16, [""], chunks=8)
    for o in "ABC":
        gen(f"mb2/b32_{o}.s", 32, [""], order=o)
    for o in "ABCS":
        gen(f"mb2/b16_{o}.s", 16, [""], order=o)
    gen(f"mb2/b16_A_fa.s", 16, [""], order="A", frag="a")
    gen(f"mb2/b16_A_negp.s", 16, [""], order="A", pos_p=False)
```

```python
import os
from mb2_gen import gen
os.system("rm -rf mb8"); os.makedirs("mb8", exist_ok=True)
def m(d, a, b, c=None, op="v_mfma_f32_16x16x32_bf16"):
    c = c or d
    return f"{op} {d}, {a}, {b}, {c}"
A = lambda i: f"a[{192+4*(i%16)}:{192+4*(i%16)+3}]"
B = lambda i: f"a[{128+4*(i%16)}:{128+4*(i%16)+3}]"
C = lambda i: f"a[{4*(i%32)}:{4*(i%32)+3}]"
def pat(odd):
    g = []
    for x in odd: g += ["exp", x]
    return g
base = ["rv,rv", "cvt", "rv,rv", "cvt", "rv,rv", "cvt", "rv,rv", "cvt", "rk", "cvt", "rk", "cvt", "rk", "cvt", "rk", "cvt"]
for u in (1, 8, 32, 64):
    mf = [m(C(i//4), A(i), B(i*5)) for i in range(64*u)]
    gen(f"mb8/u{u:02d}.s", 16, pat(base + base) * u, custom=mf, iters=64//u)
for u in (8, 32, 64):
    s = open(f"mb8/u{u:02d}.s").read()
    nb = u * 960 + 1024
    pf = ["s_getpc_b64 s[40:41]", "L_pc:", "s_add_u32 s40, s40, L_loop0-L_pc", "s_addc_u32 s41, s41, 0", "v_lshlrev_b32 v5, 6, v0"]
    for i in range((nb + 16383) // 16384):
        pf += [f"global_load_dword v6, v5, s[40:41]", "v_add_u32 v5, 16384, v5"]
    s = s.replace("s_lshl_b32 s3, s2, 16\n", "\n".join(pf) + "\ns_lshl_b32 s3, s2, 16\n")
    s = s.replace("s_endpgm\n", "s_endpgm\n.fill 8192, 4, 0xbf800000\n")
    open(f"mb8/u{u:02d}_pf.s", "w").write(s)
```
